```python
import torch

def _softmax(x, axis=-1):
    return torch.softmax(x, dim=axis)
def _gelu(x):
    return torch.nn.functional.gelu(x, approximate="tanh")
def _silu(x):
    return torch.nn.functional.silu(x)
def _sigmoid(x):
    return torch.sigmoid(x)
def _layernorm(x, axis=-1, eps=1e-5):
    m = x.mean(dim=axis, keepdim=True)
    v = x.var(dim=axis, keepdim=True, unbiased=False)
    return (x - m) / torch.sqrt(v + eps)
def _scatter_add(tgt, idx, src, axis=0):
    return tgt.clone().index_add_(axis, idx, src)
def _segment_sum(src, seg, n):
    out = torch.zeros((n,) + src.shape[1:], dtype=src.dtype)
    return out.index_add_(0, seg, src)
def _pad(x, pw):
    flat = tuple(v for pair in reversed(pw) for v in pair)
    return torch.nn.functional.pad(x, flat)

kernel_name = 'gather_scatter__edge_featured_mpnn_gatedgcn__graph'

def setup_inputs():

    _w = (lambda a: (lambda t: t.to(torch.bfloat16) if t.is_floating_point() else t)(torch.as_tensor(a)))
    N, deg, D, De = 10000, 16, 128, max(16, 1)
    E = N * deg
    return {
        "x": _w((lambda *s: torch.randn(*s, dtype=torch.bfloat16) * 0.4)(N, D)),
        "e_attr": _w((lambda *s: torch.randn(*s, dtype=torch.bfloat16) * 0.4)(E, De)),
        "src": _w((lambda lo, hi, *s: torch.randint(lo, hi, s))(0, N, E).to(torch.int64)),
        "dst": _w((lambda lo, hi, *s: torch.randint(lo, hi, s))(0, N, E).to(torch.int64)),
        "w_a": _w((lambda *s: torch.randn(*s, dtype=torch.bfloat16) * 0.4)(D, D)),
        "w_b": _w((lambda *s: torch.randn(*s, dtype=torch.bfloat16) * 0.4)(D, D)),
        "w_c": _w((lambda *s: torch.randn(*s, dtype=torch.bfloat16) * 0.4)(De, D)),
        "w_u": _w((lambda *s: torch.randn(*s, dtype=torch.bfloat16) * 0.05)(D, D)),
        "w_v": _w((lambda *s: torch.randn(*s, dtype=torch.bfloat16) * 0.05)(D, D)),
    }

def reference(x, e_attr, src, dst, w_a, w_b, w_c, w_u, w_v):
    N, D = x.shape
    hv = x @ w_v
    g = x[dst] @ w_a + x[src] @ w_b + e_attr @ w_c
    eta = _sigmoid(g)
    denom = _segment_sum(eta, dst, N) + 1e-6
    eta_n = eta / denom[dst]
    agg = _segment_sum(eta_n * hv[src], dst, N)
    z = x @ w_u + agg
    relu_z = torch.where(z > 0, z, 0 * z)
    return x + relu_z
```

```python
import sys
nextra = int(sys.argv[1]) if len(sys.argv) > 1 else 0
single = len(sys.argv) > 2 and sys.argv[2] == 'single'
name = "gather_scatter__edge_featured_mpnn_gatedgcn__graph"
hdr = open('cdna_kernels/%s.s.ref' % name).read().split('; Override launch')[0]
o = [hdr.rstrip()]
if single:
    o.append("; @launch grid=(10000,1,1) block=(64,1,1) lds=0")
else:
    o.append("; @launch kernel=%s_kernel grid=(10000,1,1) block=(64,1,1) lds=0" % name)
    for i in range(nextra):
        o.append("; @launch kernel=empty_kernel grid=(256,1,1) block=(256,1,1) lds=0")
o.append('''.amdgcn_target "amdgcn-amd-amdhsa--gfx950"
.text
.macro MATVEC xv, srd, nk2, acc0, acc1
  v_mov_b32 \\acc0, 0
  v_mov_b32 \\acc1, 0
  .set j, 0
  .rept \\nk2
    s_mov_b32 s40, j*512
    buffer_load_dword v20, v2, s[\\srd:\\srd+3], s40 offen
    buffer_load_dword v21, v2, s[\\srd:\\srd+3], s40 offen offset:256
    v_readlane_b32 s41, \\xv, j
    s_nop 3
    s_lshl_b32 s42, s41, 16
    s_and_b32 s43, s41, 0xffff0000
    s_waitcnt vmcnt(0)
    v_lshlrev_b32 v22, 16, v20
    v_and_b32 v23, 0xffff0000, v20
    v_fmac_f32 \\acc0, s42, v22
    v_fmac_f32 \\acc1, s42, v23
    v_lshlrev_b32 v22, 16, v21
    v_and_b32 v23, 0xffff0000, v21
    v_fmac_f32 \\acc0, s43, v22
    v_fmac_f32 \\acc1, s43, v23
    .set j, j+1
  .endr
.endm
.macro SRD d, lo, hi, size
  s_mov_b32 s[\\d], s[\\lo]
  s_mov_b32 s[\\d+1], s[\\hi]
  s_mov_b32 s[\\d+2], \\size
  s_mov_b32 s[\\d+3], 0x00020000
.endm
.globl %(n)s_kernel
.p2align 8
.type %(n)s_kernel,@function
%(n)s_kernel:
  s_cmp_ge_u32 s2, 10000
  s_cbranch_scc1 L_done
  s_load_dwordx16 s[4:19], s[0:1], 0
  s_load_dwordx4 s[20:23], s[0:1], 64
  s_waitcnt lgkmcnt(0)
  SRD 44, 4, 5, 2560000
  SRD 48, 6, 7, 5120000
  SRD 52, 8, 9, 640000
  SRD 56, 10, 11, 640000
  SRD 60, 12, 13, 32768
  SRD 64, 14, 15, 32768
  SRD 68, 16, 17, 4096
  SRD 72, 18, 19, 32768
  SRD 76, 20, 21, 32768
  SRD 80, 22, 23, 2560000
  v_lshlrev_b32 v2, 2, v0
  s_lshl_b32 s24, s2, 8
  buffer_load_dword v3, v2, s[44:47], s24 offen
  s_waitcnt vmcnt(0)
  MATVEC v3, 60, 64, v10, v11
  MATVEC v3, 72, 64, v12, v13
  v_mov_b32 v14, 0
  v_mov_b32 v15, 0
  v_mov_b32 v16, 0
  v_mov_b32 v17, 0
  s_mov_b32 s25, 0
L_scan:
  s_lshl_b32 s26, s25, 2
  buffer_load_dword v4, v2, s[56:59], s26 offen
  buffer_load_dword v5, v2, s[52:55], s26 offen
  s_waitcnt vmcnt(0)
  v_cmp_eq_u32 vcc, s2, v4
  s_nop 4
  s_mov_b64 s[28:29], vcc
L_match:
  s_cmp_eq_u64 s[28:29], 0
  s_cbranch_scc1 L_next
  s_ff1_i32_b64 s30, s[28:29]
  s_bitset0_b64 s[28:29], s30
  s_nop 3
  v_readlane_b32 s31, v5, s30
  s_nop 3
  s_lshl_b32 s32, s31, 8
  buffer_load_dword v6, v2, s[44:47], s32 offen
  s_add_u32 s33, s25, s30
  s_lshl_b32 s33, s33, 5
  v_and_b32 v8, 7, v0
  v_lshlrev_b32 v8, 2, v8
  buffer_load_dword v7, v8, s[48:51], s33 offen
  s_waitcnt vmcnt(0)
  MATVEC v6, 64, 64, v24, v25
  MATVEC v6, 76, 64, v26, v27
  MATVEC v7, 68, 8, v28, v29
  v_add_f32 v24, v24, v10
  v_add_f32 v25, v25, v11
  v_add_f32 v24, v24, v28
  v_add_f32 v25, v25, v29
  v_mul_f32 v24, 0xbfb8aa3b, v24
  v_mul_f32 v25, 0xbfb8aa3b, v25
  v_exp_f32 v24, v24
  v_exp_f32 v25, v25
  s_nop 0
  v_add_f32 v24, 1.0, v24
  v_add_f32 v25, 1.0, v25
  v_rcp_f32 v24, v24
  v_rcp_f32 v25, v25
  s_nop 0
  v_add_f32 v16, v16, v24
  v_add_f32 v17, v17, v25
  v_fmac_f32 v14, v24, v26
  v_fmac_f32 v15, v25, v27
  s_branch L_match
L_next:
  s_add_u32 s25, s25, 64
  s_cmp_lt_u32 s25, 160000
  s_cbranch_scc1 L_scan
  v_add_f32 v16, 0x358637bd, v16
  v_add_f32 v17, 0x358637bd, v17
  v_rcp_f32 v16, v16
  v_rcp_f32 v17, v17
  s_nop 0
  v_fmac_f32 v12, v14, v16
  v_fmac_f32 v13, v15, v17
  v_max_f32 v12, 0, v12
  v_max_f32 v13, 0, v13
  v_lshlrev_b32 v22, 16, v3
  v_and_b32 v23, 0xffff0000, v3
  v_add_f32 v12, v12, v22
  v_add_f32 v13, v13, v23
  v_cvt_pk_bf16_f32 v12, v12, v13
  buffer_store_dword v12, v2, s[80:83], s24 offen
  s_waitcnt vmcnt(0)
L_done:
  s_endpgm
''' % dict(n=name))
if not single and nextra:
    o.append('''.globl empty_kernel
.p2align 8
.type empty_kernel,@function
empty_kernel:
  s_endpgm
''')
o.append('''.section .rodata,"a"
.p2align 6
.amdhsa_kernel %s_kernel
  .amdhsa_next_free_vgpr 32
  .amdhsa_next_free_sgpr 96
  .amdhsa_accum_offset 32
  .amdhsa_group_segment_fixed_size 0
  .amdhsa_kernarg_size 96
  .amdhsa_user_sgpr_count 2
  .amdhsa_user_sgpr_kernarg_segment_ptr 1
  .amdhsa_system_sgpr_workgroup_id_x 1
.end_amdhsa_kernel
''' % name)
if not single and nextra:
    o.append('''.p2align 6
.amdhsa_kernel empty_kernel
  .amdhsa_next_free_vgpr 8
  .amdhsa_next_free_sgpr 16
  .amdhsa_accum_offset 8
  .amdhsa_group_segment_fixed_size 0
  .amdhsa_kernarg_size 96
  .amdhsa_user_sgpr_count 2
  .amdhsa_user_sgpr_kernarg_segment_ptr 1
  .amdhsa_system_sgpr_workgroup_id_x 1
.end_amdhsa_kernel
''')
print("\n".join(o))
```
